```python
import torch

def _softmax(x, axis=-1):
    return torch.softmax(x, dim=axis)
def _gelu(x):
    return torch.nn.functional.gelu(x, approximate="tanh")
def _silu(x):
    return torch.nn.functional.silu(x)
def _sigmoid(x):
    return torch.sigmoid(x)
def _layernorm(x, axis=-1, eps=1e-5):
    m = x.mean(dim=axis, keepdim=True)
    v = x.var(dim=axis, keepdim=True, unbiased=False)
    return (x - m) / torch.sqrt(v + eps)
def _scatter_add(tgt, idx, src, axis=0):
    return tgt.clone().index_add_(axis, idx, src)
def _segment_sum(src, seg, n):
    out = torch.zeros((n,) + src.shape[1:], dtype=src.dtype)
    return out.index_add_(0, seg, src)
def _pad(x, pw):
    flat = tuple(v for pair in reversed(pw) for v in pair)
    return torch.nn.functional.pad(x, flat)

kernel_name = 'gated_mix__gqa_block_cached__glu_gated_swiglu__decode'

def setup_inputs():

    _w = (lambda a: (lambda t: t.to(torch.bfloat16) if t.is_floating_point() else t)(torch.as_tensor(a)))
    def _A_setup():
        B, Sq, D = 2, 1, 448
        Hq, Hkv, Sk, Dh = 16, 8, 32768, 256
        assert Hq % Hkv == 0, (Hq, Hkv)
        return {
            "x": _w((lambda *s: torch.randn(*s, dtype=torch.bfloat16) * 0.05)(B, Sq, D)),
            "k_cache": _w((lambda *s: torch.randn(*s, dtype=torch.bfloat16) * 3.2)(B, Hkv, Sk, Dh)),
            "v_cache": _w((lambda *s: torch.randn(*s, dtype=torch.bfloat16) * 0.05)(B, Hkv, Sk, Dh)),
            "wq": _w((lambda *s: torch.randn(*s, dtype=torch.bfloat16) * 3.2)(D, Hq * Dh) * (D ** -0.5)),
            "wo": _w((lambda *s: torch.randn(*s, dtype=torch.bfloat16) * 0.05)(Hq * Dh, D) * ((Hq * Dh) ** -0.5)),
        }
    _A_in = _A_setup()

    def _B_setup():
        B, S, D, F = 2, 1, 448, 1792
        return {
            "x": _w((lambda *s: torch.randn(*s, dtype=torch.bfloat16) * 0.05)(B, S, D)),
            "w1": _w((lambda *s: torch.randn(*s, dtype=torch.bfloat16) * 0.1)(D, F) * (2.0 / D) ** 0.5),
            "w3": _w((lambda *s: torch.randn(*s, dtype=torch.bfloat16) * 0.1)(D, F) * (2.0 / D) ** 0.5),
            "w2": _w((lambda *s: torch.randn(*s, dtype=torch.bfloat16) * 0.1)(F, D) * (2.0 / F) ** 0.5),
        }
    _B_in = _B_setup()

    return {
        "A_x": _A_in["x"],
        "A_k_cache": _A_in["k_cache"],
        "A_v_cache": _A_in["v_cache"],
        "A_wq": _A_in["wq"],
        "A_wo": _A_in["wo"],
        "B_x": _B_in["x"],
        "B_w1": _B_in["w1"],
        "B_w3": _B_in["w3"],
        "B_w2": _B_in["w2"],
        "gate_w": _w((lambda *s: torch.randn(*s, dtype=torch.bfloat16) * 0.05)(448) * 16.0),
    }

def reference(A_x, A_k_cache, A_v_cache, A_wq, A_wo, B_x, B_w1, B_w3, B_w2, gate_w):
    def _A_ref(x, k_cache, v_cache, wq, wo):
        B, Sq, D = x.shape
        Hq, Dh = 16, 256
        Hkv = k_cache.shape[1]
        rep = Hq // Hkv
        q = (lambda x, *d: x.permute(*d))((x @ wq).reshape(B, Sq, Hq, Dh), 0, 2, 1, 3)
        k = (lambda x, n, axis: torch.repeat_interleave(x, n, dim=axis))(k_cache, rep, axis=1)
        v = (lambda x, n, axis: torch.repeat_interleave(x, n, dim=axis))(v_cache, rep, axis=1)
        scores = torch.einsum("bhqd,bhkd->bhqk", q, k) * (Dh ** -0.5)
        p = _softmax(scores, axis=-1)
        o = torch.einsum("bhqk,bhkd->bhqd", p, v)
        return (lambda x, *d: x.permute(*d))(o, 0, 2, 1, 3).reshape(B, Sq, Hq * Dh) @ wo

    def _B_ref(x, w1, w3, w2):
        gate = torch.einsum("bsd,df->bsf", x, w1)
        up = torch.einsum("bsd,df->bsf", x, w3)
        h = _silu(gate) * up
        out = torch.einsum("bsf,fd->bsd", h, w2)
        return out

    x = A_x
    g = _sigmoid((x * gate_w).sum(-1, keepdims=True))
    a = _A_ref(x, A_k_cache, A_v_cache, A_wq, A_wo)
    b = _B_ref(x, B_w1, B_w3, B_w2)
    return g * a + (1 - g) * b
```

```python
import struct, sys, math
NAME = 'gated_mix__gqa_block_cached__glu_gated_swiglu__decode'

def f32bits(x):
    return struct.unpack('<I', struct.pack('<f', x))[0]

HEADER = open('cdna_kernels/' + NAME + '.s.ref').read().split('; Override launch')[0]

WS_EPOCH = 0
WS_QG = 0x10000
WS_ML = 0x20000
WS_OG = 0x100000
WS_PG = 0x200000
WS_ST = 0x400000
WS_SIZE = 0x800000
L_Q = 0
L_CNT = 1024
L_M = 1088
L_L = 1152
L_X = 1280
L_GW = 3328
L_OP = 4352
L_W0 = L_OP + 16384
L_W1 = L_W0 + 14336
L_WO = L_W1 + 14336
L_END = L_WO + 32768

SPIN_MAX = 400000

def gen(stamps=False, round_scores=False, pol='nt'):
    L = []
    def A(s): L.append('  ' + s)
    def lab(s): L.append(s + ':')
    def C(s): L.append('  ; ' + s)
    L.append(HEADER.rstrip())
    L.append(f'; @launch grid=(256,1,1) block=(512,1,1) lds={L_END}')
    L.append('.amdgcn_target "amdgcn-amd-amdhsa--gfx950"')
    L.append('.text')
    L.append(f'.globl {NAME}_kernel')
    L.append('.p2align 8')
    L.append(f'.type {NAME}_kernel,@function')
    lab(f'{NAME}_kernel')

    sWave, sHkv, sB, sSplit, sIdx, sG = 's3', 's4', 's5', 's6', 's7', 's8'
    sTag, sC, sT0, sT1, sNext, sOff, sTmp, sTmp2, sSpin = 's9', 's10', 's11', 's12', 's13', 's14', 's15', 's60', 's61'
    pX, pK, pV, pWq, pWo, pW1, pW3, pW2, pGw, pOut, pDbg, pWs = 16, 18, 20, 22, 24, 28, 30, 32, 34, 36, 38, 40
    rK, rV, rWs, rT = 44, 48, 52, 56
    sEp = 's42'
    sA0, sA1 = 's62', 's63'
    sHiMask = 's[64:65]'
    sStamp = 's[66:67]'
    sStampBase = 's68'
    def srd(r): return f's[{r}:{r+3}]'
    vLane, vN, vG, vKoff, vVoff = 'v1', 'v2', 'v3', 'v4', 'v5'
    vM, vNMC, vL, vT, vNx, vCnt, vOne = 'v6', 'v7', 'v8', 'v9', 'v10', 'v11', 'v12'
    vT2, vT3, vT4 = 'v13', 'v14', 'v15'
    MASK, S, P, PP, O, AOP, Q, ACCB, vGate = 16, 20, 24, 28, 32, 40, 56, 88, 'v104'
    vLin16 = 'v105'
    vT5, vT6 = 'v106', 'v107'
    RING = 112
    def vr(b, n=4): return f'v[{b}:{b+n-1}]'

    def stamp(i):
        if not stamps: return
        A('s_memrealtime ' + sStamp)
        A('s_waitcnt lgkmcnt(0)')
        A('v_mov_b32 v108, s66')
        A('v_mov_b32 v109, s67')
        A('v_mov_b32 v110, 0')
        A('s_mov_b64 exec, 1')
        A(f'buffer_store_dwordx2 v[108:109], v110, {srd(rWs)}, {sStampBase} offen offset:{i*8}')
        A('s_mov_b64 exec, -1')

    def set_srd(r, p, nbytes):
        A(f's_mov_b32 s{r}, s{p}')
        A(f's_and_b32 s{r+1}, s{p+1}, 0xffff')
        A(f's_mov_b32 s{r+2}, {nbytes}')
        A(f's_mov_b32 s{r+3}, 0x20000')

    def load_K(slot, soff):
        r = RING + 64 * slot
        for j in range(8):
            A(f'buffer_load_dwordx4 {vr(r+4*j)}, {vKoff}, {srd(rK)}, {soff} offen offset:{j*64} {pol}')
    def load_V(slot, soff):
        r = RING + 64 * slot + 32
        for rr in range(4):
            for hf in range(2):
                A(f'buffer_load_dwordx4 {vr(r+4*(rr*2+hf))}, {vVoff}, {srd(rV)}, {soff} offen offset:{rr*512+hf*256} {pol}')

    A('s_cmp_ge_u32 s2, 256')
    A('s_cbranch_scc1 L_end')
    A('s_load_dwordx16 s[16:31], s[0:1], 0')
    A('s_load_dwordx8 s[32:39], s[0:1], 64')
    A('s_load_dwordx2 s[40:41], s[0:1], 96')
    A('v_lshrrev_b32 v9, 6, v0')
    A(f'v_and_b32 {vLane}, 63, v0')
    A(f'v_and_b32 {vN}, 15, v0')
    A(f'v_readfirstlane_b32 {sWave}, v9')
    A(f'v_lshrrev_b32 {vG}, 4, {vLane}')
    A(f'v_lshlrev_b32 {vKoff}, 9, {vN}')
    A(f'v_lshl_add_u32 {vKoff}, {vG}, 4, {vKoff}')
    A(f'v_lshlrev_b32 {vVoff}, 11, {vG}')
    A(f'v_lshl_add_u32 {vVoff}, {vN}, 4, {vVoff}')
    A(f'v_lshlrev_b32 {vLin16}, 4, {vLane}')
    A(f's_and_b32 {sHkv}, s2, 7')
    A(f's_bfe_u32 {sB}, s2, 0x10003')
    A(f's_lshr_b32 {sSplit}, s2, 4')
    A(f's_lshr_b32 {sIdx}, s2, 3')
    A(f's_and_b32 {sG}, s2, 15')
    A(f's_lshl_b32 {sTmp}, {sG}, 24')
    A(f's_lshl_b32 {sTmp2}, {sSplit}, 20')
    A(f's_or_b32 {sTmp}, {sTmp}, {sTmp2}')
    A(f's_mov_b32 {sC}, {f32bits(math.log2(math.e) / 16.0):#x}')
    A('s_mov_b32 s64, 0')
    A('s_mov_b32 s65, -1')
    A('s_waitcnt lgkmcnt(0)')
    A(f's_load_dword {sEp}, s[{pWs}:{pWs+1}], {WS_EPOCH}')
    A(f's_add_u32 s{rK}, s{pK}, {sTmp}')
    A(f's_addc_u32 s{rK+1}, s{pK+1}, 0')
    A(f's_and_b32 s{rK+1}, s{rK+1}, 0xffff')
    A(f's_mov_b32 s{rK+2}, 0x100000')
    A(f's_mov_b32 s{rK+3}, 0x20000')
    A(f's_add_u32 s{rV}, s{pV}, {sTmp}')
    A(f's_addc_u32 s{rV+1}, s{pV+1}, 0')
    A(f's_and_b32 s{rV+1}, s{rV+1}, 0xffff')
    A(f's_mov_b32 s{rV+2}, 0x100000')
    A(f's_mov_b32 s{rV+3}, 0x20000')
    set_srd(rWs, pWs, WS_SIZE)
    if stamps:
        A(f's_lshl_b32 {sStampBase}, s2, 3')
        A(f's_add_u32 {sStampBase}, {sStampBase}, {sWave}')
        A(f's_lshl_b32 {sStampBase}, {sStampBase}, 7')
        A(f's_add_u32 {sStampBase}, {sStampBase}, {WS_ST}')
    A(f's_cmp_eq_u32 {sWave}, 0')
    A('s_cbranch_scc1 L_helper_start')

    A('s_barrier')
    A(f's_sub_u32 {sT0}, {sWave}, 1')
    A(f's_add_u32 {sT1}, {sWave}, 6')
    A(f's_lshl_b32 {sOff}, {sT0}, 13')
    load_K(0, sOff); load_V(0, sOff)
    A(f's_lshl_b32 {sOff}, {sT1}, 13')
    load_K(1, sOff); load_V(1, sOff)
    A('s_branch L_common_init')

    lab('L_helper_start')
    A('s_setprio 2')
    C('x -> LDS (2 DMA), wq slice -> LDS (14 DMA)')
    set_srd(rT, pWq, 448 * 8192)
    A(f'v_lshrrev_b32 {vT}, 1, {vLane}')
    A(f'v_lshlrev_b32 {vT}, 13, {vT}')
    A(f'v_and_b32 {vT2}, 1, {vLane}')
    A(f'v_lshl_add_u32 {vT}, {vT2}, 4, {vT}')
    A(f's_lshl_b32 {sOff}, {sHkv}, 10')
    A(f's_lshl_b32 {sTmp}, {sIdx}, 5')
    A(f's_add_u32 {sOff}, {sOff}, {sTmp}')
    for s in range(14):
        A(f's_mov_b32 m0, {L_W0 + s*1024}')
        A('s_nop 0')
        A(f'buffer_load_dwordx4 {vT}, {srd(rT)}, {sOff} offen lds')
        if s < 13: A(f's_add_u32 {sOff}, {sOff}, {32*8192}')
    set_srd(rT, pX, 1792)
    A(f's_mov_b32 m0, {L_X}')
    A('s_nop 0')
    A(f'buffer_load_dwordx4 {vLin16}, {srd(rT)}, 0 offen lds')
    A(f'buffer_load_dwordx4 {vLin16}, {srd(rT)}, 0 offen offset:1024 lds')
    A('s_barrier')
    stamp(0)
    C('LDS addresses for operand reads')
    XOP, WOP = RING, RING + 56
    vXa, vWa = vT3, vT4
    A(f'v_lshrrev_b32 {vXa}, 3, {vN}')
    A(f'v_mul_u32_u24 {vXa}, 896, {vXa}')
    A(f'v_lshl_add_u32 {vXa}, {vG}, 4, {vXa}')
    A(f'v_lshlrev_b32 {vWa}, 8, {vG}')
    A(f'v_lshl_add_u32 {vWa}, {vN}, 3, {vWa}')
    A('s_waitcnt vmcnt(0) lgkmcnt(0)')
    A(f's_add_u32 {sTag}, {sEp}, 1')
    stamp(1)
    for s in range(14):
        A(f'ds_read_b128 {vr(XOP+4*s)}, {vXa} offset:{L_X + s*64}')
    def tr_reads(base):
        for s in range(14):
            for hf in range(2):
                A(f'ds_read_b64_tr_b16 {vr(WOP+4*s+2*hf, 2)}, {vWa} offset:{base + s*1024 + hf*128}')
    def chain(dst):
        for s in range(14):
            c = '0' if s == 0 else vr(dst)
            A(f'v_mfma_f32_16x16x32_bf16 {vr(dst)}, {vr(WOP+4*s)}, {vr(XOP+4*s)}, {c}')
    tr_reads(L_W0)
    A('s_waitcnt lgkmcnt(0)')
    chain(S)
    C('publish q slice: lanes n==0 / n==8')
    A(f'v_lshrrev_b32 {vT}, 3, {vN}')
    A(f'v_lshlrev_b32 {vT}, 14, {vT}')
    A(f'v_lshl_add_u32 {vT}, {vG}, 4, {vT}')
    A(f's_lshl_b32 {sOff}, {sHkv}, 11')
    A(f's_lshl_b32 {sTmp}, {sIdx}, 6')
    A(f's_add_u32 {sOff}, {sOff}, {sTmp}')
    A(f's_add_u32 {sOff}, {sOff}, {WS_QG}')
    A(f'v_mov_b32 v{P+1}, {sTag}')
    A(f'v_mov_b32 v{P+3}, {sTag}')
    A('s_nop 1')
    A(f'v_cvt_pk_bf16_f32 v{P}, v{S}, v{S+1}')
    A(f'v_cvt_pk_bf16_f32 v{P+2}, v{S+2}, v{S+3}')
    A('s_mov_b32 exec_lo, 0x01010101')
    A('s_mov_b32 exec_hi, 0x01010101')
    A(f'buffer_store_dwordx4 {vr(P)}, {vT}, {srd(rWs)}, {sOff} offen sc1')
    A('s_mov_b64 exec, -1')
    stamp(2)
    C('poll for the 512 q values of this group')
    A(f's_lshl_b32 {sOff}, {sG}, 11')
    A(f's_add_u32 {sOff}, {sOff}, {WS_QG}')
    A(f's_mov_b32 {sSpin}, {SPIN_MAX}')
    lab('L_qpoll')
    A(f'buffer_load_dwordx4 {vr(AOP)}, {vLin16}, {srd(rWs)}, {sOff} offen sc1')
    A(f'buffer_load_dwordx4 {vr(AOP+4)}, {vLin16}, {srd(rWs)}, {sOff} offen offset:1024 sc1')
    A('s_waitcnt vmcnt(0)')
    A(f'v_xor_b32 {vT}, {sTag}, v{AOP+1}')
    A(f'v_xor_b32 {vT2}, {sTag}, v{AOP+3}')
    A(f'v_xor_b32 {vT5}, {sTag}, v{AOP+5}')
    A(f'v_xor_b32 {vT6}, {sTag}, v{AOP+7}')
    A(f'v_or3_b32 {vT}, {vT}, {vT2}, {vT5}')
    A(f'v_or_b32 {vT}, {vT}, {vT6}')
    A(f'v_cmp_ne_u32 vcc, 0, {vT}')
    A('s_cbranch_vccz L_qdone')
    A(f's_sub_u32 {sSpin}, {sSpin}, 1')
    A(f's_cmp_lg_u32 {sSpin}, 0')
    A('s_cbranch_scc1 L_qpoll')
    lab('L_qdone')
    A(f'v_lshlrev_b32 {vT}, 3, {vLane}')
    A(f'ds_write2_b32 {vT}, v{AOP}, v{AOP+2} offset0:{L_Q//4} offset1:{L_Q//4+1}')
    A(f'ds_write2_b32 {vT}, v{AOP+4}, v{AOP+6} offset0:{L_Q//4+128} offset1:{L_Q//4+129}')
    A(f'v_mov_b32 {vT}, {L_CNT}')
    A(f'v_mov_b32 {vT2}, 14')
    A(f'ds_write_b32 {vT}, {vT2}')
    A('s_waitcnt lgkmcnt(0)')
    A('s_barrier')
    stamp(3)
    C('---- side jobs: gate, FFN slice, wo prefetch ----')
    set_srd(rT, pGw, 896)
    A(f's_mov_b32 m0, {L_GW}')
    A('s_nop 0')
    A(f'buffer_load_dwordx4 {vLin16}, {srd(rT)}, 0 offen lds')
    C('wo slice rows hkv*512 + 32*split + 8g + u, cols 128*blk + 8n')
    set_srd(rT, pWo, 4096 * 896)
    A(f'v_mul_u32_u24 {vT}, {8*896}, {vG}')
    A(f'v_lshl_add_u32 {vT}, {vN}, 4, {vT}')
    A(f's_lshl_b32 {sOff}, {sHkv}, 9')
    A(f's_lshl_b32 {sTmp}, {sSplit}, 5')
    A(f's_add_u32 {sOff}, {sOff}, {sTmp}')
    A(f's_mul_i32 {sOff}, {sOff}, 896')
    for u in range(8):
        for blk in range(4):
            A(f's_mov_b32 m0, {L_WO + (u*4+blk)*1024 - blk*256}')
            A('s_nop 0')
            A(f'buffer_load_dwordx4 {vT}, {srd(rT)}, {sOff} offen offset:{blk*256} lds')
        if u < 7: A(f's_add_u32 {sOff}, {sOff}, 896')
    for i in range(16):
        A(f'v_mov_b32 v{ACCB+i}, 0')
    A(f's_cmp_ge_u32 {sSplit}, 14')
    A('s_cbranch_scc1 L_noffn')
    C('FFN slice fs = hkv*14 + split')
    sFs = sNext
    A(f's_mul_i32 {sFs}, {sHkv}, 14')
    A(f's_add_u32 {sFs}, {sFs}, {sSplit}')
    A(f'v_lshrrev_b32 {vT}, 1, {vLane}')
    A(f'v_mul_u32_u24 {vT}, 3584, {vT}')
    A(f'v_and_b32 {vT2}, 1, {vLane}')
    A(f'v_lshl_add_u32 {vT}, {vT2}, 4, {vT}')
    for (p, base) in ((pW1, L_W0), (pW3, L_W1)):
        set_srd(rT, p, 448 * 3584)
        A(f's_lshl_b32 {sOff}, {sFs}, 5')
        for s in range(14):
            A(f's_mov_b32 m0, {base + s*1024}')
            A('s_nop 0')
            A(f'buffer_load_dwordx4 {vT}, {srd(rT)}, {sOff} offen lds')
            if s < 13: A(f's_add_u32 {sOff}, {sOff}, {32*3584}')
    A('s_waitcnt vmcnt(0)')
    GATE, UP = S, P
    tr_reads(L_W0)
    A('s_waitcnt lgkmcnt(0)')
    chain(GATE)
    tr_reads(L_W1)
    A('s_waitcnt lgkmcnt(0)')
    chain(UP)
    C('w2 rows 16fs + 4g + u, cols 128blk + 8n -> W2 regs (reuse the W operand area + Q area is free too)')
    W2 = WOP
    set_srd(rT, pW2, 1792 * 896)
    A(f'v_mul_u32_u24 {vT}, {4*896}, {vG}')
    A(f'v_lshl_add_u32 {vT}, {vN}, 4, {vT}')
    A(f's_mul_i32 {sOff}, {sFs}, {16*896}')
    A('s_nop 7')
    for u in range(4):
        for blk in range(4):
            A(f'buffer_load_dwordx4 {vr(W2+4*(u*4+blk))}, {vT}, {srd(rT)}, {sOff} offen offset:{u*896+blk*256}')
    C('h = bf16(bf16(silu(bf16 gate)) * bf16 up)')
    def round_bf16_4(b, t0, t1):
        A(f'v_cvt_pk_bf16_f32 {t0}, v{b}, v{b+1}')
        A(f'v_cvt_pk_bf16_f32 {t1}, v{b+2}, v{b+3}')
        A(f'v_lshlrev_b32 v{b}, 16, {t0}')
        A(f'v_and_b32 v{b+1}, 0xffff0000, {t0}')
        A(f'v_lshlrev_b32 v{b+2}, 16, {t1}')
        A(f'v_and_b32 v{b+3}, 0xffff0000, {t1}')
    round_bf16_4(GATE, vT5, vT6)
    round_bf16_4(UP, vT5, vT6)
    for r in range(4):
        A(f'v_mul_f32 v{PP+r}, {f32bits(-math.log2(math.e)):#x}, v{GATE+r}')
    for r in range(4):
        A(f'v_exp_f32 v{PP+r}, v{PP+r}')
    A('s_nop 0')
    for r in range(4):
        A(f'v_add_f32 v{PP+r}, 1.0, v{PP+r}')
    for r in range(4):
        A(f'v_rcp_f32 v{PP+r}, v{PP+r}')
    A('s_nop 0')
    for r in range(4):
        A(f'v_mul_f32 v{GATE+r}, v{GATE+r}, v{PP+r}')
    round_bf16_4(GATE, vT5, vT6)
    for r in range(4):
        A(f'v_mul_f32 v{GATE+r}, v{GATE+r}, v{UP+r}')
    lab('L_noffn')
    def make_masks():
        C('delta masks: e = n&7 ; mask_v = (e>>1==v) ? (e&1 ? 0xffff0000 : 0xffff) : 0')
        A(f'v_and_b32 {vT}, 1, {vN}')
        A(f'v_lshlrev_b32 {vT}, 4, {vT}')
        A(f'v_mov_b32 {vT2}, 0xffff')
        A(f'v_lshlrev_b32 {vT}, {vT}, {vT2}')
        A(f'v_bfe_u32 {vT2}, {vN}, 1, 2')
        for v in range(4):
            A(f'v_cmp_eq_u32 vcc, {v}, {vT2}')
            A('s_nop 1')
            A(f'v_cndmask_b32 v{MASK+v}, 0, {vT}, vcc')
    make_masks()
    A(f's_cmp_ge_u32 {sSplit}, 14')
    A('s_cbranch_scc1 L_noffn2')
    for r in range(4):
        A(f'v_cvt_pk_bf16_f32 v{PP+r}, v{GATE+r}, v{GATE+r}')
    for r in range(4):
        for v in range(4):
            A(f'v_and_b32 v{AOP+4*r+v}, v{PP+r}, v{MASK+v}')
    A('s_waitcnt vmcnt(0)')
    for u in range(4):
        for blk in range(4):
            A(f'v_mfma_f32_16x16x32_bf16 {vr(ACCB+4*blk)}, {vr(AOP+4*u)}, {vr(W2+4*(u*4+blk))}, {vr(ACCB+4*blk)}')
    lab('L_noffn2')
    C('gate: z = dot(gate_w, x[b]) ; A = gate_w replicated rows, B = x')
    A('s_waitcnt vmcnt(0)')
    A(f'v_lshlrev_b32 {vT}, 4, {vG}')
    A('s_nop 7')
    for s in range(14):
        A(f'ds_read_b128 {vr(WOP+4*s)}, {vT} offset:{L_GW + s*64}')
    A('s_waitcnt lgkmcnt(0)')
    chain(S)
    A('s_nop 7')
    C('lane (n,g): z for batch n>>3 ; take batch b')
    A(f's_lshl_b32 {sTmp}, {sB}, 3')
    A('s_nop 0')
    A(f'v_readlane_b32 {sTmp2}, v{S}, {sTmp}')
    A('s_nop 1')
    A(f'v_mov_b32 {vGate}, {sTmp2}')
    A(f'v_mul_f32 {vGate}, {f32bits(-math.log2(math.e)):#x}, {vGate}')
    A(f'v_exp_f32 {vGate}, {vGate}')
    A('s_nop 0')
    A(f'v_add_f32 {vGate}, 1.0, {vGate}')
    A(f'v_rcp_f32 {vGate}, {vGate}')
    A('s_nop 0')
    A(f'v_sub_f32 {vT}, 1.0, {vGate}')
    for i in range(16):
        A(f'v_mul_f32 v{ACCB+i}, v{ACCB+i}, {vT}')
    A('s_setprio 0')
    C('join the stream: grab two tiles')
    A(f'v_mov_b32 {vCnt}, {L_CNT}')
    A(f'v_mov_b32 {vOne}, 2')
    A('s_mov_b64 exec, 1')
    A(f'ds_add_rtn_u32 {vNx}, {vCnt}, {vOne}')
    A('s_mov_b64 exec, -1')
    A('s_waitcnt lgkmcnt(0)')
    A(f'v_readfirstlane_b32 {sT0}, {vNx}')
    A('s_nop 3')
    A(f's_add_u32 {sT1}, {sT0}, 1')
    A(f's_lshl_b32 {sOff}, {sT0}, 13')
    load_K(0, sOff); load_V(0, sOff)
    A(f's_lshl_b32 {sOff}, {sT1}, 13')
    load_K(1, sOff); load_V(1, sOff)
    stamp(4)
    A('s_branch L_state_init')

    lab('L_common_init')
    make_masks()
    A('s_waitcnt lgkmcnt(0)')
    A(f's_add_u32 {sTag}, {sEp}, 1')
    A('s_barrier')
    lab('L_state_init')
    A(f'v_mov_b32 {vCnt}, {L_CNT}')
    A(f'v_mov_b32 {vOne}, 1')
    A(f'v_mov_b32 {vM}, {f32bits(-3.0e38):#x}')
    A(f'v_mov_b32 {vNMC}, 0')
    A(f'v_mov_b32 {vL}, 0')
    for i in range(8):
        A(f'v_mov_b32 v{O+i}, 0')
    C('Q operand: lane (n,g), step j: Q[n>>3][(4j+g)*8..+8]')
    A(f'v_lshrrev_b32 {vT}, 3, {vN}')
    A(f'v_lshlrev_b32 {vT}, 9, {vT}')
    A(f'v_lshl_add_u32 {vT}, {vG}, 4, {vT}')
    for j in range(8):
        A(f'ds_read_b128 {vr(Q+4*j)}, {vT} offset:{L_Q + j*64}')
    A('s_waitcnt lgkmcnt(0)')
    if stamps:
        pass

    lab('L_loop')
    for s in range(2):
        sT = sT0 if s == 0 else sT1
        KB = RING + 64 * s
        VB = KB + 32
        A(f's_cmp_ge_u32 {sT}, 128')
        A('s_cbranch_scc1 L_loop_done')
        A('s_mov_b64 exec, 1')
        A(f'ds_add_rtn_u32 {vNx}, {vCnt}, {vOne}')
        A('s_mov_b64 exec, -1')
        A('s_waitcnt vmcnt(24)')
        for j in range(8):
            c = '0' if j == 0 else vr(S)
            A(f'v_mfma_f32_16x16x32_bf16 {vr(S)}, {vr(KB+4*j)}, {vr(Q+4*j)}, {c}')
        A('s_waitcnt lgkmcnt(0)')
        A(f'v_readfirstlane_b32 {sT}, {vNx}')
        A('s_nop 3')
        A(f's_lshl_b32 {sOff}, {sT}, 13')
        load_K(s, sOff)
        if round_scores:
            round_bf16_4(S, vT5, vT6)
        A(f'v_max3_f32 {vT}, v{S}, v{S+1}, v{S+2}')
        A(f'v_max_f32 {vT}, {vT}, v{S+3}')
        A(f'v_cmp_gt_f32 vcc, {vT}, {vM}')
        A(f's_cbranch_vccnz L_rare{s}')
        lab(f'L_back{s}')
        for r in range(4):
            A(f'v_fma_f32 v{P+r}, v{S+r}, {sC}, {vNMC}')
        for r in range(4):
            A(f'v_exp_f32 v{P+r}, v{P+r}')
        A('s_nop 0')
        for r in range(4):
            A(f'v_cvt_pk_bf16_f32 v{PP+r}, v{P+r}, v{P+r}')
        A(f'v_add_f32 {vT}, v{P}, v{P+1}')
        A(f'v_add_f32 {vT2}, v{P+2}, v{P+3}')
        for r in range(4):
            for v in range(4):
                A(f'v_and_b32 v{AOP+4*r+v}, v{PP+r}, v{MASK+v}')
        A(f'v_add_f32 {vT}, {vT}, {vT2}')
        A(f'v_add_f32 {vL}, {vL}, {vT}')
        A('s_waitcnt vmcnt(24)')
        for r in range(4):
            for hf in range(2):
                A(f'v_mfma_f32_16x16x32_bf16 {vr(O+4*hf)}, {vr(AOP+4*r)}, {vr(VB+4*(r*2+hf))}, {vr(O+4*hf)}')
        load_V(s, sOff)
    A('s_branch L_loop')

    for s in range(2):
        lab(f'L_rare{s}')
        A(f'v_mov_b32 {vT2}, {vT}')
        A('s_nop 1')
        A(f'v_permlane32_swap_b32 {vT}, {vT2}')
        A(f'v_max_f32 {vT}, {vT}, {vT2}')
        A(f'v_mov_b32 {vT2}, {vT}')
        A('s_nop 1')
        A(f'v_permlane16_swap_b32 {vT}, {vT2}')
        A(f'v_max3_f32 {vT}, {vT}, {vT2}, {vM}')
        A(f'v_sub_f32 {vT2}, {vM}, {vT}')
        A(f'v_mul_f32 {vT2}, {sC}, {vT2}')
        A(f'v_exp_f32 {vT2}, {vT2}')
        A(f'v_mov_b32 {vM}, {vT}')
        A(f'v_mul_f32 {vNMC}, {sC}, {vT}')
        A(f'v_sub_f32 {vNMC}, 0, {vNMC}')
        A(f'v_mul_f32 {vL}, {vL}, {vT2}')
        A(f'v_readlane_b32 {sA0}, {vT2}, 0')
        A(f'v_readlane_b32 {sA1}, {vT2}, 8')
        A('s_nop 1')
        A(f'v_mov_b32 {vT}, {sA0}')
        A(f'v_mov_b32 {vT2}, {sA1}')
        A(f'v_cndmask_b32 {vT}, {vT}, {vT2}, {sHiMask}')
        for i in range(8):
            A(f'v_mul_f32 v{O+i}, v{O+i}, {vT}')
        A(f's_branch L_back{s}')

    lab('L_loop_done')
    stamp(5)
    C('E1: l all-reduce over g, write partials to LDS')
    A(f'v_mov_b32 {vT2}, {vL}')
    A('s_nop 1')
    A(f'v_permlane32_swap_b32 {vL}, {vT2}')
    A(f'v_add_f32 {vL}, {vL}, {vT2}')
    A(f'v_mov_b32 {vT2}, {vL}')
    A('s_nop 1')
    A(f'v_permlane16_swap_b32 {vL}, {vT2}')
    A(f'v_add_f32 {vL}, {vL}, {vT2}')
    C('O partial: LDS[L_OP + wave*2048 + h*1024 + (128hf + 8n + 4(g&1))*4]')
    A(f'v_lshrrev_b32 {vT}, 1, {vG}')
    A(f'v_lshlrev_b32 {vT}, 10, {vT}')
    A(f'v_lshl_add_u32 {vT}, {vN}, 5, {vT}')
    A(f'v_and_b32 {vT2}, 1, {vG}')
    A(f'v_lshl_add_u32 {vT}, {vT2}, 4, {vT}')
    A(f's_lshl_b32 {sTmp}, {sWave}, 11')
    A(f'v_add_u32 {vT}, {sTmp}, {vT}')
    A('s_nop 4')
    A(f'ds_write_b128 {vT}, {vr(O)} offset:{L_OP}')
    A(f'ds_write_b128 {vT}, {vr(O+4)} offset:{L_OP+512}')
    C('m,l: lanes 0 and 8 -> L_M[h][w], L_L[h][w]')
    A(f'v_lshlrev_b32 {vT}, 2, {vN}')
    A(f's_lshl_b32 {sTmp}, {sWave}, 2')
    A(f'v_add_u32 {vT}, {sTmp}, {vT}')
    A('s_mov_b64 exec, 0x101')
    A(f'ds_write_b32 {vT}, {vM} offset:{L_M}')
    A(f'ds_write_b32 {vT}, {vL} offset:{L_L}')
    A('s_mov_b64 exec, -1')
    A('s_waitcnt vmcnt(0) lgkmcnt(0)')
    A('s_barrier')
    C('combine: thread t -> (h = t>>8, d = t&255)')
    MW, LW, OW = RING, RING + 8, RING + 16
    A(f'v_lshrrev_b32 {vT}, 8, v0')
    A(f'v_lshlrev_b32 {vT}, 5, {vT}')
    A(f'ds_read_b128 {vr(MW)}, {vT} offset:{L_M}')
    A(f'ds_read_b128 {vr(MW+4)}, {vT} offset:{L_M+16}')
    A(f'ds_read_b128 {vr(LW)}, {vT} offset:{L_L}')
    A(f'ds_read_b128 {vr(LW+4)}, {vT} offset:{L_L+16}')
    A(f'v_lshlrev_b32 {vT2}, 2, v0')
    for w in range(8):
        A(f'ds_read_b32 v{OW+w}, {vT2} offset:{L_OP + w*2048}')
    C('helper wave also starts reading its wo fragments')
    WOF = RING + 32
    A('s_waitcnt lgkmcnt(8)')
    A(f'v_max3_f32 {vM}, v{MW}, v{MW+1}, v{MW+2}')
    A(f'v_max3_f32 {vM}, {vM}, v{MW+3}, v{MW+4}')
    A(f'v_max3_f32 {vM}, {vM}, v{MW+5}, v{MW+6}')
    A(f'v_max_f32 {vM}, {vM}, v{MW+7}')
    for w in range(8):
        A(f'v_sub_f32 v{MW+w}, v{MW+w}, {vM}')
    for w in range(8):
        A(f'v_mul_f32 v{MW+w}, {sC}, v{MW+w}')
    for w in range(8):
        A(f'v_exp_f32 v{MW+w}, v{MW+w}')
    A('s_waitcnt lgkmcnt(0)')
    A(f'v_mul_f32 v{P}, v{MW}, v{OW}')
    A(f'v_mul_f32 {vL}, v{MW}, v{LW}')
    for w in range(1, 8):
        A(f'v_fmac_f32 v{P}, v{MW+w}, v{OW+w}')
        A(f'v_fmac_f32 {vL}, v{MW+w}, v{LW+w}')
    A(f'v_mov_b32 v{P+1}, {sTag}')
    C('E2 publish: OG[G][c=t>>5][split][j=t&31]')
    A(f'v_lshrrev_b32 {vT}, 5, v0')
    A(f'v_lshlrev_b32 {vT}, 12, {vT}')
    A(f'v_and_b32 {vT2}, 31, v0')
    A(f'v_lshl_add_u32 {vT}, {vT2}, 3, {vT}')
    A(f's_lshl_b32 {sOff}, {sG}, 16')
    A(f's_lshl_b32 {sTmp}, {sSplit}, 8')
    A(f's_add_u32 {sOff}, {sOff}, {sTmp}')
    A(f's_add_u32 {sOff}, {sOff}, {WS_OG}')
    A(f'buffer_store_dwordx2 {vr(P,2)}, {vT}, {srd(rWs)}, {sOff} offen sc1')
    C('ML[G][h][split] by thread 0 (wave 0) and thread 256 (wave 4)')
    A(f's_and_b32 {sTmp}, {sWave}, 3')
    A(f's_cmp_lg_u32 {sTmp}, 0')
    A('s_cbranch_scc1 L_end')
    A(f'v_mov_b32 v{PP}, {vM}')
    A(f'v_mov_b32 v{PP+1}, {sTag}')
    A(f'v_mov_b32 v{PP+2}, {vL}')
    A(f'v_mov_b32 v{PP+3}, {sTag}')
    A(f'v_mov_b32 {vT}, 0')
    A(f's_lshl_b32 {sOff}, {sG}, 9')
    A(f's_lshl_b32 {sTmp}, {sWave}, 6')
    A(f's_add_u32 {sOff}, {sOff}, {sTmp}')
    A(f's_lshl_b32 {sTmp}, {sSplit}, 4')
    A(f's_add_u32 {sOff}, {sOff}, {sTmp}')
    A(f's_add_u32 {sOff}, {sOff}, {WS_ML}')
    A('s_mov_b64 exec, 1')
    A(f'buffer_store_dwordx4 {vr(PP)}, {vT}, {srd(rWs)}, {sOff} offen sc1')
    A('s_mov_b64 exec, -1')
    A(f's_cmp_lg_u32 {sWave}, 0')
    A('s_cbranch_scc1 L_end')
    stamp(6)
    C('---- helper: E2 gather ----')
    WOF = RING
    A(f'v_add_u32 {vT5}, {L_WO}, {vLin16}')
    for i in range(32):
        A(f'ds_read_b128 {vr(WOF+4*i)}, {vT5} offset:{i*1024}')
    GA = Q
    A(f'v_lshlrev_b32 {vT}, 8, {vN}')
    A(f'v_lshl_add_u32 {vT}, {vG}, 6, {vT}')
    A(f'v_lshlrev_b32 {vT2}, 4, {vN}')
    A(f's_lshl_b32 {sOff}, {sG}, 16')
    A(f's_lshl_b32 {sTmp}, {sSplit}, 12')
    A(f's_add_u32 {sOff}, {sOff}, {sTmp}')
    A(f's_add_u32 {sOff}, {sOff}, {WS_OG}')
    A(f's_lshl_b32 {sTmp2}, {sG}, 9')
    A(f's_lshr_b32 {sTmp}, {sSplit}, 3')
    A(f's_lshl_b32 {sTmp}, {sTmp}, 8')
    A(f's_add_u32 {sTmp2}, {sTmp2}, {sTmp}')
    A(f's_add_u32 {sTmp2}, {sTmp2}, {WS_ML}')
    A(f's_mov_b32 {sSpin}, {SPIN_MAX}')
    lab('L_opoll')
    for i in range(4):
        A(f'buffer_load_dwordx4 {vr(GA+4*i)}, {vT}, {srd(rWs)}, {sOff} offen offset:{i*16} sc1')
    A(f'buffer_load_dwordx4 {vr(GA+16)}, {vT2}, {srd(rWs)}, {sTmp2} offen sc1')
    A('s_waitcnt vmcnt(0)')
    def check_tags(regs, lab_done, lab_loop):
        A(f'v_xor_b32 {vT5}, {sTag}, v{regs[0]}')
        rest = regs[1:]
        while rest:
            if len(rest) >= 2:
                A(f'v_xor_b32 {vT3}, {sTag}, v{rest[0]}')
                A(f'v_xor_b32 {vT4}, {sTag}, v{rest[1]}')
                A(f'v_or3_b32 {vT5}, {vT5}, {vT3}, {vT4}')
                rest = rest[2:]
            else:
                A(f'v_xor_b32 {vT3}, {sTag}, v{rest[0]}')
                A(f'v_or_b32 {vT5}, {vT5}, {vT3}')
                rest = rest[1:]
        A(f'v_cmp_ne_u32 vcc, 0, {vT5}')
        A(f's_cbranch_vccz {lab_done}')
        A('s_sleep 2')
        A(f's_sub_u32 {sSpin}, {sSpin}, 1')
        A(f's_cmp_lg_u32 {sSpin}, 0')
        A(f's_cbranch_scc1 {lab_loop}')
    check_tags([GA + 2*i + 1 for i in range(10)], 'L_odone', 'L_opoll')
    lab('L_odone')
    stamp(7)
    def allreduce16(op, regs, tmp=None):
        for ror in (8, 4, 2, 1):
            A('s_nop 1')
            for r in regs:
                A(f'{op}_dpp {r}, {r}, {r} row_ror:{ror} row_mask:0xf bank_mask:0xf')
    vMs, vLs = f'v{GA+16}', f'v{GA+18}'
    A(f'v_mov_b32 {vT}, {vMs}')
    allreduce16('v_max_f32', [vT])
    A(f'v_sub_f32 {vT}, {vMs}, {vT}')
    A(f'v_mul_f32 {vT}, {sC}, {vT}')
    A(f'v_exp_f32 {vT}, {vT}')
    A('s_nop 0')
    A(f'v_mul_f32 {vLs}, {vLs}, {vT}')
    for u in range(8):
        A(f'v_mul_f32 v{GA+2*u}, v{GA+2*u}, {vT}')
    allreduce16('v_add_f32', [vLs] + [f'v{GA+2*u}' for u in range(8)])
    A(f'v_rcp_f32 {vLs}, {vLs}')
    A('s_nop 0')
    for u in range(8):
        A(f'v_mul_f32 v{GA+2*u}, v{GA+2*u}, {vLs}')
    for u in range(8):
        A(f'v_cvt_pk_bf16_f32 v{GA+2*u}, v{GA+2*u}, v{GA+2*u}')
    ACCA = 20
    A('s_waitcnt lgkmcnt(0)')
    for u in range(8):
        ao = AOP + 4 * (u % 4)
        for v in range(4):
            A(f'v_and_b32 v{ao+v}, v{GA+2*u}, v{MASK+v}')
        A('s_nop 1')
        for blk in range(4):
            c = '0' if u == 0 else vr(ACCA + 4*blk)
            A(f'v_mfma_f32_16x16x32_bf16 {vr(ACCA+4*blk)}, {vr(ao)}, {vr(WOF+4*(u*4+blk))}, {c}')
    C('out partial = g*a + (1-g)*b ; lanes with (g>>1)==b hold batch b rows; col = 128blk + 8n + 4(g&1) + r')
    A(f'v_and_b32 {vT2}, 1, {vG}')
    A(f'v_lshlrev_b32 {vT}, 6, {vN}')
    A(f'v_lshl_add_u32 {vT}, {vT2}, 5, {vT}')
    A(f's_lshl_b32 {sOff}, {sB}, 7')
    A(f's_lshl_b32 {sTmp}, {sHkv}, 4')
    A(f's_add_u32 {sOff}, {sOff}, {sTmp}')
    A(f's_add_u32 {sOff}, {sOff}, {sSplit}')
    A(f's_lshl_b32 {sOff}, {sOff}, 12')
    A(f's_add_u32 {sOff}, {sOff}, {WS_PG}')
    A(f's_cmp_eq_u32 {sB}, 0')
    A(f's_cselect_b32 {sA0}, -1, 0')
    A(f's_cselect_b32 {sA1}, 0, -1')
    OUTG = RING
    A('s_nop 4')
    for blk in range(4):
        for r in range(4):
            A(f'v_fma_f32 v{OUTG+8*blk+2*r}, v{ACCA+4*blk+r}, {vGate}, v{ACCB+4*blk+r}')
            A(f'v_mov_b32 v{OUTG+8*blk+2*r+1}, {sTag}')
    A(f's_mov_b32 exec_lo, {sA0}')
    A(f's_mov_b32 exec_hi, {sA1}')
    for blk in range(4):
        A(f'buffer_store_dwordx4 {vr(OUTG+8*blk)}, {vT}, {srd(rWs)}, {sOff} offen offset:{blk*1024} sc1')
        A(f'buffer_store_dwordx4 {vr(OUTG+8*blk+4)}, {vT}, {srd(rWs)}, {sOff} offen offset:{blk*1024+16} sc1')
    A('s_mov_b64 exec, -1')
    stamp(8)
    A(f's_cmp_ge_u32 {sSplit}, 14')
    A('s_cbranch_scc1 L_end')
    C('---- final reduce: columns 4Qd..4Qd+3 of batch b ----')
    sQd = sNext
    A(f's_mul_i32 {sQd}, {sHkv}, 14')
    A(f's_add_u32 {sQd}, {sQd}, {sSplit}')
    A(f'v_lshrrev_b32 {vT}, 1, {vLane}')
    A(f'v_lshlrev_b32 {vT}, 12, {vT}')
    A(f'v_and_b32 {vT2}, 1, {vLane}')
    A(f'v_lshl_add_u32 {vT}, {vT2}, 4, {vT}')
    A(f's_lshl_b32 {sOff}, {sB}, 19')
    A(f's_lshl_b32 {sTmp}, {sQd}, 5')
    A(f's_add_u32 {sOff}, {sOff}, {sTmp}')
    A(f's_add_u32 {sOff}, {sOff}, {WS_PG}')
    A(f's_add_u32 s70, {sOff}, {1*32*4096}')
    A(f's_add_u32 s71, {sOff}, {2*32*4096}')
    A(f's_add_u32 s72, {sOff}, {3*32*4096}')
    A(f's_mov_b32 {sSpin}, {SPIN_MAX}')
    lab('L_fpoll')
    for i, so in enumerate((sOff, 's70', 's71', 's72')):
        A(f'buffer_load_dwordx4 {vr(GA+4*i)}, {vT}, {srd(rWs)}, {so} offen sc1')
    A('s_waitcnt vmcnt(0)')
    check_tags([GA + 2*i + 1 for i in range(8)], 'L_fdone', 'L_fpoll')
    lab('L_fdone')
    stamp(9)
    a0, a1 = f'v{GA}', f'v{GA+2}'
    A(f'v_add_f32 {a0}, {a0}, v{GA+4}')
    A(f'v_add_f32 {a1}, {a1}, v{GA+6}')
    A(f'v_add_f32 v{GA+8}, v{GA+8}, v{GA+12}')
    A(f'v_add_f32 v{GA+10}, v{GA+10}, v{GA+14}')
    A(f'v_add_f32 {a0}, {a0}, v{GA+8}')
    A(f'v_add_f32 {a1}, {a1}, v{GA+10}')
    for ror in (8, 4, 2):
        A('s_nop 1')
        A(f'v_add_f32_dpp {a0}, {a0}, {a0} row_ror:{ror} row_mask:0xf bank_mask:0xf')
        A(f'v_add_f32_dpp {a1}, {a1}, {a1} row_ror:{ror} row_mask:0xf bank_mask:0xf')
    for sw in ('v_permlane32_swap_b32', 'v_permlane16_swap_b32'):
        A(f'v_mov_b32 {vT3}, {a0}')
        A(f'v_mov_b32 {vT4}, {a1}')
        A('s_nop 1')
        A(f'{sw} {a0}, {vT3}')
        A(f'{sw} {a1}, {vT4}')
        A(f'v_add_f32 {a0}, {a0}, {vT3}')
        A(f'v_add_f32 {a1}, {a1}, {vT4}')
    A(f'v_cvt_pk_bf16_f32 {a0}, {a0}, {a1}')
    set_srd(rT, pOut, 1792)
    A(f'v_lshlrev_b32 {vT}, 2, {vLane}')
    A(f's_mul_i32 {sOff}, {sB}, 896')
    A(f's_lshl_b32 {sTmp}, {sQd}, 3')
    A(f's_add_u32 {sOff}, {sOff}, {sTmp}')
    A('s_mov_b64 exec, 3')
    A(f'buffer_store_dword {a0}, {vT}, {srd(rT)}, {sOff} offen')
    C('workgroup 0 advances the epoch (every workgroup has read it by now)')
    A('s_cmp_lg_u32 s2, 0')
    A('s_cbranch_scc1 L_end')
    A('s_mov_b64 exec, 1')
    A(f'v_mov_b32 {vT2}, {sTag}')
    A(f'buffer_store_dword {vT2}, {vT}, {srd(rWs)}, 0 offen offset:{WS_EPOCH}')
    lab('L_end')
    A('s_endpgm')
    L.append('.section .rodata,"a"')
    L.append('.p2align 6')
    L.append(f'.amdhsa_kernel {NAME}_kernel')
    L.append('  .amdhsa_next_free_vgpr 240')
    L.append('  .amdhsa_next_free_sgpr 80')
    L.append('  .amdhsa_accum_offset 240')
    L.append('  .amdhsa_group_segment_fixed_size 0')
    L.append('  .amdhsa_kernarg_size 104')
    L.append('  .amdhsa_user_sgpr_count 2')
    L.append('  .amdhsa_user_sgpr_kernarg_segment_ptr 1')
    L.append('  .amdhsa_system_sgpr_workgroup_id_x 1')
    L.append('  .amdhsa_float_denorm_mode_32 3')
    L.append('.end_amdhsa_kernel')
    return '\n'.join(L) + '\n'

if __name__ == '__main__':
    open('v1.s', 'w').write(gen())
    open('v1_st.s', 'w').write(gen(stamps=True))
    open('v1_rs.s', 'w').write(gen(round_scores=True))
```
